```python
import torch

def _softmax(x, axis=-1):
    return torch.softmax(x, dim=axis)
def _gelu(x):
    return torch.nn.functional.gelu(x, approximate="tanh")
def _silu(x):
    return torch.nn.functional.silu(x)
def _sigmoid(x):
    return torch.sigmoid(x)
def _layernorm(x, axis=-1, eps=1e-5):
    m = x.mean(dim=axis, keepdim=True)
    v = x.var(dim=axis, keepdim=True, unbiased=False)
    return (x - m) / torch.sqrt(v + eps)
def _scatter_add(tgt, idx, src, axis=0):
    return tgt.clone().index_add_(axis, idx, src)
def _segment_sum(src, seg, n):
    out = torch.zeros((n,) + src.shape[1:], dtype=src.dtype)
    return out.index_add_(0, seg, src)
def _pad(x, pw):
    flat = tuple(v for pair in reversed(pw) for v in pair)
    return torch.nn.functional.pad(x, flat)

kernel_name = 'sequential_preLN__softmax_full_mha__mixer_channel_mlp__prompt'

def setup_inputs():

    _w = (lambda a: (lambda t: t.to(torch.bfloat16) if t.is_floating_point() else t)(torch.as_tensor(a)))
    def _A_setup():
        B, S, D = 1, 2048, 448
        return {
            "x": _w((lambda *s: torch.randn(*s, dtype=torch.bfloat16) * 0.05)(B, S, D)),
            "wqkv": _w((lambda *s: torch.randn(*s, dtype=torch.bfloat16) * 0.05)(D, 3 * D)),
            "wo": _w((lambda *s: torch.randn(*s, dtype=torch.bfloat16) * 0.05)(D, D)),
        }
    _A_in = _A_setup()

    def _B_setup():
        B, S, D, F = 1, 2048, 448, 1792
        return {
            "x": _w((lambda *s: torch.randn(*s, dtype=torch.bfloat16) * 0.05)(B, S, D)),
            "w1": _w((lambda *s: torch.randn(*s, dtype=torch.bfloat16) * 1.6)(D, F) * (D ** -0.5)),
            "b1": _w((lambda *s: torch.randn(*s, dtype=torch.bfloat16) * 0.8)(F)),
            "w2": _w((lambda *s: torch.randn(*s, dtype=torch.bfloat16) * 0.05)(F, D) * (F ** -0.5)),
            "b2": _w((lambda *s: torch.randn(*s, dtype=torch.bfloat16) * 0.05)(D)),
        }
    _B_in = _B_setup()

    return {
        "A_x": _A_in["x"],
        "A_wqkv": _A_in["wqkv"],
        "A_wo": _A_in["wo"],
        "B_x": _B_in["x"],
        "B_w1": _B_in["w1"],
        "B_b1": _B_in["b1"],
        "B_w2": _B_in["w2"],
        "B_b2": _B_in["b2"],
    }

def reference(A_x, A_wqkv, A_wo, B_x, B_w1, B_b1, B_w2, B_b2):
    def _A_ref(x, wqkv, wo):
        B, S, D = x.shape
        H = 16; Dh = D // H
        qkv = (lambda x, *d: x.permute(*d))((x @ wqkv).reshape(B, S, 3, H, Dh), 2, 0, 3, 1, 4)
        q, k, v = qkv[0], qkv[1], qkv[2]
        scale = Dh ** -0.5
        scores = torch.einsum("bhqd,bhkd->bhqk", q, k) * scale
        p = _softmax(scores, axis=-1)
        o = torch.einsum("bhqk,bhkd->bhqd", p, v)
        return (lambda x, *d: x.permute(*d))(o, 0, 2, 1, 3).reshape(B, S, D) @ wo

    def _B_ref(x, w1, b1, w2, b2):
        y = _layernorm(x, axis=-1)
        h = _gelu(torch.einsum("bsd,df->bsf", y, w1) + b1)
        return torch.einsum("bsf,fd->bsd", h, w2) + b2

    x = A_x
    h = x + _A_ref(_layernorm(x, axis=-1), A_wqkv, A_wo)
    h2 = h + _B_ref(_layernorm(h, axis=-1), B_w1, B_b1, B_w2, B_b2)
    return h2
```

```python
import re

TRANS = ("v_exp_f32", "v_rcp_f32", "v_rsq_f32", "v_log_f32", "v_sqrt_f32", "v_sin_f32", "v_cos_f32",
         "v_exp_f16", "v_rcp_f16", "v_rcp_iflag_f32")
REG_RE = re.compile(r"^(-|\|)?(abs\()?([vas])(\d+|\[(\d+):(\d+)\])\)?\|?$")

def regs_of(tok):
    tok = tok.strip()
    if tok in ("vcc", "exec"):
        return [(tok, 0), (tok, 1)]
    if tok in ("vcc_lo", "exec_lo"):
        return [(tok[:-3], 0)]
    if tok in ("vcc_hi", "exec_hi"):
        return [(tok[:-3], 1)]
    if tok == "m0":
        return [("m0", 0)]
    m = REG_RE.match(tok)
    if not m:
        return []
    k = m.group(3)
    if m.group(5) is not None:
        return [(k, i) for i in range(int(m.group(5)), int(m.group(6)) + 1)]
    return [(k, int(m.group(4)))]

def split_ops(s):
    out, depth, cur = [], 0, ""
    for ch in s:
        if ch in "[(":
            depth += 1
        if ch in "])":
            depth -= 1
        if ch == "," and depth == 0:
            out.append(cur.strip()); cur = ""
        else:
            cur += ch
    if cur.strip():
        out.append(cur.strip())
    return out

class Ins:
    __slots__ = ("text", "op", "kind", "w", "r", "srcc", "ab", "passes", "states", "dpp", "lds", "wide", "data")

def isvec(r):
    return r[0] in ("v", "a")
def issg(r):
    return r[0] in ("s", "vcc")

def parse(text):
    i = Ins(); i.text = text
    t = text.split(";")[0].strip()
    parts = t.split(None, 1)
    op = parts[0]; rest = parts[1] if len(parts) > 1 else ""
    i.op = op; i.w = set(); i.r = set(); i.srcc = set(); i.ab = set(); i.passes = 0; i.states = 1
    i.dpp = False; i.lds = False; i.wide = False; i.data = set()
    ops = split_ops(rest)
    mods = []
    if ops:
        sp = ops[-1].split()
        ops[-1] = sp[0]; mods = sp[1:]
    R = [regs_of(o) for o in ops]
    if op == "s_nop":
        i.kind = "nop"; i.states = int(ops[0], 0) + 1
    elif op.startswith("v_mfma"):
        i.kind = "mfma"
        i.passes = 8 if "32x32" in op else 4
        i.w = set(R[0]); i.ab = set(R[1]) | set(R[2]); i.srcc = set(R[3]); i.r = i.ab | i.srcc
    elif op.startswith("v_"):
        i.kind = "valu"
        base = op.replace("_e32", "").replace("_e64", "").replace("_dpp", "")
        if base in TRANS: i.kind = "trans"
        if base.startswith("v_dot"): i.kind = "dot"
        i.dpp = op.endswith("_dpp") or any(m.startswith(("quad_perm", "row_", "wave_")) for m in mods)
        i.w = set(R[0])
        srcs = R[1:]
        if base in ("v_add_co_u32", "v_sub_co_u32", "v_addc_co_u32", "v_subb_co_u32", "v_subrev_co_u32", "v_mad_u64_u32", "v_div_scale_f32"):
            i.w |= set(R[1]); srcs = R[2:]
        for s in srcs: i.r |= set(s)
        if base in ("v_fmac_f32", "v_dot2c_f32_bf16", "v_pk_fmac_f16", "v_writelane_b32") or i.dpp:
            i.r |= set(R[0])
        if base.startswith("v_permlane") and "swap" in base:
            i.w |= set(R[1]); i.r |= set(R[0])
        if base in ("v_dot2c_f32_bf16",):
            i.srcc = set(R[0]); i.ab = set(R[1]) | set(R[2])
        if base == "v_dot2_f32_bf16":
            i.srcc = set(R[3]); i.ab = set(R[1]) | set(R[2])
        if base.startswith("v_cmpx"):
            i.w |= {("exec", 0), ("exec", 1)}
    elif op.startswith(("buffer_", "global_")):
        i.kind = "vmem"
        i.lds = "lds" in mods or "_lds_" in op
        if op in ("buffer_wbl2", "buffer_inv"):
            pass
        elif "store" in op or "atomic" in op:
            for s in R: i.r |= set(s)
            d = R[0] if op.startswith("buffer_") else R[1]
            i.data = set(d)
            i.wide = op.endswith(("x3", "x4"))
            if "atomic" in op and "sc0" in mods:
                i.w = set(R[0])
        elif i.lds:
            for s in R: i.r |= set(s)
            i.r.add(("m0", 0))
        else:
            i.w = set(R[0])
            for s in R[1:]: i.r |= set(s)
    elif op.startswith("ds_"):
        i.kind = "ds"
        if op.startswith(("ds_read", "ds_bpermute", "ds_permute", "ds_swizzle")):
            i.w = set(R[0])
            for s in R[1:]: i.r |= set(s)
        else:
            for s in R: i.r |= set(s)
    elif op.startswith("s_"):
        i.kind = "salu"
        if op.startswith(("s_load", "s_memtime", "s_memrealtime", "s_buffer_load")):
            i.kind = "smem"
        if op.startswith(("s_cmp", "s_cbranch", "s_branch", "s_waitcnt", "s_barrier", "s_endpgm", "s_sleep", "s_setprio", "s_bitcmp", "s_setpc")):
            for s in R: i.r |= set(s)
        else:
            if R: i.w = set(R[0])
            for s in R[1:]: i.r |= set(s)
            if "saveexec" in op:
                i.w |= {("exec", 0), ("exec", 1)}
    else:
        raise ValueError("unknown instruction: " + text)
    return i

VALUK = ("valu", "trans", "dot")

def need(p, c):
    n = 0
    pv = {r for r in p.w if isvec(r)}
    if p.kind in VALUK:
        if c.kind == "mfma" and pv & c.r: n = max(n, 2)
        if p.kind == "trans" and c.kind != "trans" and pv & c.r: n = max(n, 1)
        if p.kind == "dot":
            if c.op == p.op:
                if pv & c.ab: n = max(n, 3)
            elif pv & (c.r | c.w): n = max(n, 3)
        ps = {r for r in p.w if issg(r)}
        if ps & c.r:
            if c.kind == "vmem": n = max(n, 5)
            elif c.kind in VALUK:
                n = max(n, 4 if c.op.startswith(("v_readlane", "v_writelane")) else 2)
            elif c.kind in ("salu", "smem"): n = max(n, 1)
        if c.kind in VALUK and pv & c.r:
            if c.op.startswith(("v_readfirstlane", "v_readlane")): n = max(n, 1)
            if c.op.startswith("v_permlane"): n = max(n, 2)
            if c.dpp: n = max(n, 2)
        if any(r[0] == "exec" for r in p.w):
            if c.kind == "mfma" or c.op.startswith(("v_readlane", "v_readfirstlane", "v_writelane", "v_permlane")): n = max(n, 4)
            if c.dpp: n = max(n, 5)
    if p.kind == "mfma":
        big = 12 if p.passes == 8 else 8
        if c.kind == "mfma":
            if p.w & c.ab: n = max(n, big)
            if p.w & c.srcc and not (p.w == c.srcc and p.passes == c.passes): n = max(n, p.passes + 2)
        elif c.kind in VALUK or c.kind in ("vmem", "ds"):
            if p.w & (c.r | c.w): n = max(n, big)
        if c.kind in VALUK and p.srcc & c.w: n = max(n, 7 if p.passes == 8 else 3)
    if p.kind == "vmem" and p.wide and p.data & c.w:
        n = max(n, 2 if c.kind in VALUK else 1)
    if p.kind == "salu" and ("m0", 0) in p.w and c.kind == "vmem" and c.lds:
        n = max(n, 1)
    if p.kind == "salu" and any(r[0] == "exec" for r in p.w):
        if c.dpp or c.op.startswith(("v_permlane", "v_readfirstlane", "v_readlane")): n = max(n, 1)
    return n

def worst(p):
    if p.kind == "mfma": return 12 if p.passes == 8 else 8
    if p.kind in VALUK:
        if any(issg(r) or r[0] == "exec" for r in p.w): return 5
        return 3 if p.kind == "dot" else 2
    if p.kind == "vmem" and p.wide: return 2
    if p.kind == "salu" and (("m0", 0) in p.w or any(r[0] == "exec" for r in p.w)): return 1
    return 0

class Asm:
    def __init__(self):
        self.lines = []
        self.hist = []
        self.vm = 0; self.vm_done = 0
        self.lg = 0; self.lg_done = 0
        self.nops = 0
        self.maxv = 0; self.maxa = -1; self.maxs = 0
        self.uid = 0
    def raw(self, text):
        self.lines.append(text)
    def comment(self, text):
        self.lines.append("    ; " + text)
    def _pad(self, n):
        while n > 0:
            k = min(n, 16)
            ins = parse("s_nop %d" % (k - 1))
            self.lines.append("    s_nop %d" % (k - 1)); self.hist.append(ins); self.nops += k
            n -= k
    def e(self, text):
        tok = None
        for t in text.strip().split("\n"):
            t = t.strip()
            if not t: continue
            c = parse(t)
            dist = 0; req = 0
            for p in reversed(self.hist[-24:]):
                nd = need(p, c) - dist
                if nd > req: req = nd
                dist += p.states
                if dist > 20: break
            if req > 0: self._pad(req)
            self.lines.append("    " + t); self.hist.append(c)
            for r in c.w | c.r:
                if r[0] == "v": self.maxv = max(self.maxv, r[1])
                elif r[0] == "a": self.maxa = max(self.maxa, r[1])
                elif r[0] == "s": self.maxs = max(self.maxs, r[1])
            if c.kind == "vmem":
                self.vm += 1; tok = self.vm
            elif c.kind == "ds":
                self.lg += 1; tok = self.lg
            elif c.kind == "smem":
                self.lg += 2; tok = -1
            if c.op.startswith(("s_cbranch", "s_branch", "s_setpc")):
                pass
        return tok
    def fence(self):
        dist = 0; req = 0
        for p in reversed(self.hist[-24:]):
            req = max(req, worst(p) - dist)
            dist += p.states
        if req > 0: self._pad(req)
        self.hist = []
    def label(self, name, fence=True):
        if fence: self.fence()
        self.lines.append(name + ":")
    def branch(self, text, fence=True):
        if fence: self.fence()
        self.e(text)
    def newlabel(self, base):
        self.uid += 1
        return "L_%s_%d" % (base, self.uid)
    def wait_vm(self, tok):
        if tok is None or tok <= self.vm_done: return
        n = self.vm - tok
        self.e("s_waitcnt vmcnt(%d)" % min(n, 63))
        self.vm_done = tok
    def wait_lg(self, tok):
        if tok is None or (tok >= 0 and tok <= self.lg_done): return
        if tok < 0:
            self.e("s_waitcnt lgkmcnt(0)"); self.lg_done = self.lg; return
        n = self.lg - tok
        self.e("s_waitcnt lgkmcnt(%d)" % min(n, 15))
        self.lg_done = tok
    def wait_both(self, vtok, ltok):
        parts = []
        if vtok is not None and vtok > self.vm_done:
            n = self.vm - vtok
            parts.append("vmcnt(%d)" % min(n, 63))
            self.vm_done = vtok
        if ltok is not None and ltok > self.lg_done:
            n = self.lg - ltok
            parts.append("lgkmcnt(%d)" % min(n, 15))
            self.lg_done = ltok
        if parts: self.e("s_waitcnt " + " ".join(parts))
    def wait_all(self, vm=True, lg=True):
        parts = []
        if vm: parts.append("vmcnt(0)"); self.vm_done = self.vm
        if lg: parts.append("lgkmcnt(0)"); self.lg_done = self.lg
        self.e("s_waitcnt " + " ".join(parts))
    def text(self):
        return "\n".join(self.lines) + "\n"

def v(n, k=1):
    return "v%d" % n if k == 1 else "v[%d:%d]" % (n, n + k - 1)
def a(n, k=1):
    return "a%d" % n if k == 1 else "a[%d:%d]" % (n, n + k - 1)
def s(n, k=1):
    return "s%d" % n if k == 1 else "s[%d:%d]" % (n, n + k - 1)
import struct
def f32(x):
    return "0x%08x" % struct.unpack("<I", struct.pack("<f", x))[0]
```

```python
import sys, math
from asmlib import *

NAME = "sequential_preLN__softmax_full_mha__mixer_channel_mlp__prompt"
S_, D_, H_, DH, F_ = 2048, 448, 16, 28, 1792
EPS = 1e-5
FLAG_A, FLAG_B, FLAG_C, FLAG_D = 0x000000, 0x020000, 0x040000, 0x060000
WS_STAMP = 0x080000
WS_KV, WS_OF, WS_HF, WS_ST, WS_HID = 0x100000, 0x500000, 0x700000, 0x8C0000, 0x900000
WS_BYTES = 0x1000000
sW = 3
SRD_X, SRD_WQKV, SRD_WO, SRD_W1, SRD_W2, SRD_WS, SRD_OUT, SRD_DBG, SRD_B1, SRD_B2 = 8, 12, 16, 20, 24, 28, 32, 36, 40, 44
sH, sQB, sRB64, sCB, sRB128, sFB = 48, 49, 50, 51, 52, 53
sNONCE = 54
sT0, sT1, sT2, sT3 = 56, 57, 58, 59
sHI = 60
sVP = 62
sXB, sWB, sLX, sLW = 64, 65, 66, 67
sONES = 68
sKVB, sTRN, sW2B, sWOB, sW1B = 69, 70, 71, 72, 73
sSPIN = 74
sSTAMP = 76
SLOT = 28672
NSLOT = 5
L_CSP = NSLOT * SLOT
L_CSW = L_CSP + 3072
L_TS = L_CSW + 1024
L_QX = L_TS + 1024
L_RX = 114688
LDS_BYTES = 163840

def srd(A, dst, src, nbytes):
    A.e("s_mov_b32 s%d, s%d" % (dst, src))
    A.e("s_and_b32 s%d, s%d, 0xffff" % (dst + 1, src + 1))
    A.e("s_mov_b32 s%d, %d" % (dst + 2, nbytes))
    A.e("s_mov_b32 s%d, 0x20000" % (dst + 3))

class Gen:
    def __init__(self, stop=99, stamps=False, la=3, w1pre=12, stage=True, force_fb=False):
        self.w1pre = w1pre; self.stage = stage; self.force_fb = force_fb
        self.A = Asm(); self.stop = stop; self.stamps = stamps; self.nst = 0; self.la = la

    def stamp(self):
        if not self.stamps: return
        A = self.A
        A.e("s_memtime s[%d:%d]" % (sSTAMP + 2 * self.nst, sSTAMP + 2 * self.nst + 1))
        A.e("s_waitcnt lgkmcnt(0)"); A.lg_done = A.lg
        self.nst += 1

    def setup(self):
        A = self.A
        A.e("s_cmp_ge_u32 s2, 256")
        A.e("s_cbranch_scc1 L_end")
        self.stamp()
        A.e("s_load_dwordx16 s[64:79], s[0:1], 0" if not self.stamps else "s_load_dwordx8 s[64:71], s[0:1], 0")
        if self.stamps:
            A.e("s_load_dwordx8 s[40:47], s[0:1], 32")
        A.e("s_load_dwordx4 s[4:7], s[0:1], 64")
        A.e("s_load_dwordx2 s[56:57], s[0:1], 80")
        A.e("v_and_b32 v1, 63, v0")
        A.e("v_lshrrev_b32 v2, 6, v0")
        A.e("v_readfirstlane_b32 s%d, v2" % sW)
        A.e("s_and_b32 s58, s2, 7")
        A.e("s_lshr_b32 s59, s2, 3")
        A.e("s_lshr_b32 s%d, s59, 4" % sH)
        A.e("s_lshl_b32 s60, s58, 1")
        A.e("s_add_u32 s%d, s%d, s60" % (sH, sH))
        A.e("s_and_b32 s%d, s59, 15" % sQB)
        A.e("s_lshr_b32 s%d, s59, 3" % sRB64)
        A.e("s_lshl_b32 s60, s58, 2")
        A.e("s_add_u32 s%d, s%d, s60" % (sRB64, sRB64))
        A.e("s_and_b32 s%d, s59, 7" % sCB)
        A.e("s_mov_b32 s%d, s%d" % (sRB128, sH))
        A.e("s_mov_b32 s%d, s%d" % (sFB, sQB))
        A.e("s_waitcnt lgkmcnt(0)"); A.lg_done = A.lg
        if self.stamps:
            srd(A, SRD_W1, 40, D_ * F_ * 2)
            srd(A, SRD_W2, 44, F_ * D_ * 2)
            A.e("s_mov_b32 s72, s42\ns_mov_b32 s73, s43\ns_mov_b32 s74, s46\ns_mov_b32 s75, s47")
            srd(A, SRD_B1, 72, F_ * 2)
            srd(A, SRD_B2, 74, D_ * 2)
        else:
            srd(A, SRD_W1, 72, D_ * F_ * 2)
            srd(A, SRD_B1, 74, F_ * 2)
            srd(A, SRD_W2, 76, F_ * D_ * 2)
            srd(A, SRD_B2, 78, D_ * 2)
        srd(A, SRD_X, 64, S_ * D_ * 2)
        srd(A, SRD_WQKV, 66, D_ * 3 * D_ * 2)
        srd(A, SRD_WO, 68, D_ * D_ * 2)
        srd(A, SRD_OUT, 4, S_ * D_ * 2)
        srd(A, SRD_DBG, 6, 256)
        srd(A, SRD_WS, 56, WS_BYTES)
        A.e("s_mov_b32 s%d, 0" % sHI); A.e("s_mov_b32 s%d, -1" % (sHI + 1))
        A.e("s_mov_b32 s%d, 0xf0000000" % sVP); A.e("s_mov_b32 s%d, 0xf0000000" % (sVP + 1))
        A.e("s_mov_b32 s%d, 0x3f803f80" % sONES)
        A.e("s_or_b32 s4, s2, s%d" % sW)
        A.e("s_cmp_lg_u32 s4, 0")
        A.branch("s_cbranch_scc1 L_nononce")
        A.e("s_memrealtime s[4:5]")
        A.e("s_waitcnt lgkmcnt(0)"); A.lg_done = A.lg
        A.e("s_or_b32 s4, s4, 1")
        A.e("v_mov_b32 v4, s4\nv_mov_b32 v5, s5\nv_mov_b32 v6, 0")
        A.e("s_mov_b64 exec, 1")
        A.e("buffer_store_dwordx2 v[4:5], v6, s[%d:%d], 0 offen sc1" % (SRD_DBG, SRD_DBG + 3))
        A.e("s_mov_b64 exec, -1")
        A.e("s_waitcnt vmcnt(0)")
        A.vm_done = A.vm
        A.label("L_nononce")

    def poll(self, vaddr, mask, vtmp, base):
        A = self.A
        L = A.newlabel("poll"); Lo = A.newlabel("pollok")
        A.e("s_mov_b64 exec, 0x%x" % mask)
        A.e("s_mov_b32 s%d, 0x%x" % (sT0, base))
        A.e("s_mov_b32 s%d, 0x400000" % sSPIN)
        A.label(L)
        A.e("buffer_load_dwordx2 v[%d:%d], v%d, s[%d:%d], s%d offen sc1" % (vtmp, vtmp + 1, vaddr, SRD_WS, SRD_WS + 3, sT0))
        A.e("s_sub_u32 s%d, s%d, 1" % (sSPIN, sSPIN))
        A.e("s_cbranch_scc1 %s" % Lo)
        A.e("s_waitcnt vmcnt(0)")
        A.e("v_cmp_ne_u64 vcc, s[%d:%d], v[%d:%d]" % (sNONCE, sNONCE + 1, vtmp, vtmp + 1))
        A.branch("s_cbranch_vccnz %s" % L, fence=False)
        A.label(Lo)
        A.e("s_waitcnt vmcnt(0)")
        A.vm_done = A.vm
        A.e("s_mov_b64 exec, -1")

    def signal(self, soff, vtmp):
        A = self.A
        A.e("v_mov_b32 v%d, s%d" % (vtmp, sNONCE))
        A.e("v_mov_b32 v%d, s%d" % (vtmp + 1, sNONCE + 1))
        A.e("v_mov_b32 v%d, 0" % (vtmp + 2))
        A.e("s_mov_b64 exec, 1")
        A.e("buffer_store_dwordx2 v[%d:%d], v%d, s[%d:%d], s%d offen sc1" % (vtmp, vtmp + 1, vtmp + 2, SRD_WS, SRD_WS + 3, soff))
        A.e("s_mov_b64 exec, -1")

    def p1(self):
        A = self.A
        LA = self.la
        vXa, vXb, vWa = 4, 5, 6
        vXr, vTr = 8, 12
        ACC = 48
        XF = 96
        WF = 112
        vSX, vSXX, vCS = 136, 138, 140
        T = 144
        A.e("v_lshrrev_b32 v%d, 3, v1" % T)
        A.e("v_mul_u32_u24 v%d, 896, v%d" % (T, T))
        A.e("v_and_b32 v%d, 7, v1" % (T + 1))
        A.e("v_lshrrev_b32 v%d, 4, v1" % (T + 2))
        A.e("v_xor_b32 v%d, v%d, v%d" % (T + 1, T + 1, T + 2))
        A.e("v_lshl_add_u32 v%d, v%d, 4, v%d" % (vXa, T + 1, T))
        A.e("v_xor_b32 v%d, 4, v%d" % (T + 1, T + 1))
        A.e("v_lshl_add_u32 v%d, v%d, 4, v%d" % (vXb, T + 1, T))
        A.e("v_lshrrev_b32 v%d, 2, v1" % T)
        A.e("v_mul_u32_u24 v%d, 2688, v%d" % (T, T))
        A.e("v_and_b32 v%d, 3, v1" % (T + 1))
        A.e("v_lshl_add_u32 v%d, v%d, 4, v%d" % (vWa, T + 1, T))
        A.e("s_lshl_b32 s%d, s%d, 2" % (sT0, sQB))
        A.e("s_add_u32 s%d, s%d, s%d" % (sT0, sT0, sW))
        A.e("s_mul_i32 s%d, s%d, %d" % (sXB, sT0, 32 * 896))
        A.e("s_mul_i32 s%d, s%d, %d" % (sWB, sW, 16 * 2688))
        A.e("s_mul_i32 s%d, s%d, 56" % (sT1, sH))
        A.e("s_add_u32 s%d, s%d, s%d" % (sWB, sWB, sT1))
        A.e("s_lshl_b32 s%d, s%d, 12" % (sLX, sW))
        A.e("s_lshl_b32 s%d, s%d, 10" % (sLW, sW))
        A.e("s_add_u32 s%d, s%d, 16384" % (sLW, sLW))

        def issue(c):
            slot = (c % NSLOT) * SLOT
            tok = None
            for i in range(4):
                A.e("s_add_u32 s%d, s%d, %d" % (sT0, sXB, 8 * i * 896 + 128 * c))
                A.e("s_add_u32 m0, s%d, %d" % (sLX, slot + 1024 * i))
                tok = A.e("buffer_load_dwordx4 v%d, s[%d:%d], s%d offen lds" % (vXa if i % 2 == 0 else vXb, SRD_X, SRD_X + 3, sT0))
            for t in range(3):
                A.e("s_add_u32 s%d, s%d, %d" % (sT0, sWB, 64 * c * 2688 + 896 * t))
                A.e("s_add_u32 m0, s%d, %d" % (sLW, slot + 4096 * t))
                tok = A.e("buffer_load_dwordx4 v%d, s[%d:%d], s%d offen lds" % (vWa, SRD_WQKV, SRD_WQKV + 3, sT0))
            return tok
        toks = {}
        for c in range(LA):
            toks[c] = issue(c)
        A.e("v_and_b32 v%d, 31, v1" % T)
        A.e("v_lshrrev_b32 v%d, 5, v1" % (T + 1))
        A.e("v_lshrrev_b32 v%d, 1, v%d" % (T + 2, T))
        A.e("v_and_b32 v%d, 7, v%d" % (T + 2, T + 2))
        A.e("v_xor_b32 v%d, v%d, v%d" % (T + 2, T + 2, T + 1))
        A.e("v_lshlrev_b32 v%d, 7, v%d" % (T + 3, T))
        A.e("v_add_u32 v%d, s%d, v%d" % (T + 3, sLX, T + 3))
        A.e("v_bfe_u32 v%d, v1, 2, 2" % (T + 4))
        A.e("v_lshl_add_u32 v%d, v%d, 3, v%d" % (T + 4, T + 1, T + 4))
        A.e("v_lshlrev_b32 v%d, 6, v%d" % (T + 4, T + 4))
        A.e("v_bfe_u32 v%d, v1, 4, 1" % (T + 5))
        A.e("v_lshl_add_u32 v%d, v%d, 5, v%d" % (T + 4, T + 5, T + 4))
        A.e("v_and_b32 v%d, 3, v1" % (T + 5))
        A.e("v_lshl_add_u32 v%d, v%d, 3, v%d" % (T + 4, T + 5, T + 4))
        for i in range(4):
            A.e("s_add_u32 s%d, s%d, %d" % (sT0, sW, i))
            A.e("s_and_b32 s%d, s%d, 3" % (sT0, sT0))
            A.e("s_lshl_b32 s%d, s%d, 1" % (sT1, sT0))
            A.e("v_xor_b32 v%d, s%d, v%d" % (T + 5, sT1, T + 2))
            A.e("v_lshl_add_u32 v%d, v%d, 4, v%d" % (vXr + i, T + 5, T + 3))
            A.e("s_lshl_b32 s%d, s%d, 10" % (sT1, sT0))
            A.e("s_add_u32 s%d, s%d, 16384" % (sT1, sT1))
            A.e("v_add_u32 v%d, s%d, v%d" % (vTr + i, sT1, T + 4))
        for r in list(range(vSX, vSX + 2)) + list(range(vSXX, vSXX + 2)) + list(range(vCS, vCS + 3)):
            A.e("v_mov_b32 v%d, 0" % r)
        cur = 0
        ntok = None
        for c in range(7):
            slot = (c % NSLOT) * SLOT
            A.comment("P1 stage %d" % c)
            want = (slot // (2 * SLOT)) * (2 * SLOT)
            if want != cur:
                for i in range(4):
                    A.e("v_add_u32 v%d, %d, v%d" % (vXr + i, (want - cur) & 0xffffffff, vXr + i))
                    A.e("v_add_u32 v%d, %d, v%d" % (vTr + i, (want - cur) & 0xffffffff, vTr + i))
                cur = want
            off = slot - cur
            A.wait_vm(toks[c])
            A.e("s_barrier")
            xt = [A.e("ds_read_b128 v[%d:%d], v%d offset:%d" % (XF + 4 * i, XF + 4 * i + 3, vXr + i, off)) for i in range(1)]
            def rdw(i):
                b = WF + 12 * (i % 2); tk = None
                for t in range(3):
                    A.e("ds_read_b64_tr_b16 v[%d:%d], v%d offset:%d" % (b + 4 * t, b + 4 * t + 1, vTr + i, off + 4096 * t))
                    tk = A.e("ds_read_b64_tr_b16 v[%d:%d], v%d offset:%d" % (b + 4 * t + 2, b + 4 * t + 3, vTr + i, off + 4096 * t + 256))
                return tk
            wt = {0: rdw(0)}
            for i in range(1, 4):
                xt.append(A.e("ds_read_b128 v[%d:%d], v%d offset:%d" % (XF + 4 * i, XF + 4 * i + 3, vXr + i, off)))
            if c + LA < 7:
                toks[c + LA] = issue(c + LA)
            if c == 6:
                A.e("v_mov_b32 v%d, 0" % (T + 8))
                ntok = A.e("buffer_load_dwordx2 v[%d:%d], v%d, s[%d:%d], 0 offen sc1" % (T + 10, T + 11, T + 8, SRD_DBG, SRD_DBG + 3))
            for i in range(4):
                if i < 3: wt[i + 1] = rdw(i + 1)
                A.wait_lg(max(wt[i], xt[i]))
                b = WF + 12 * (i % 2); x = XF + 4 * i
                first = (c == 0 and i == 0)
                for t in range(3):
                    acc = ACC + 16 * t
                    cc = "0" if first else v(acc, 16)
                    if t < 2:
                        A.e("v_mfma_f32_32x32x16_bf16 %s, %s, %s, %s" % (v(acc, 16), v(b + 4 * t, 4), v(x, 4), cc))
                    else:
                        A.e("v_mfma_f32_32x32x16_bf16 %s, %s, %s, %s" % (v(acc, 16), v(x, 4), v(b + 4 * t, 4), cc))
                if i == 0:
                    for j in range(4):
                        for t in range(3):
                            A.e("v_dot2c_f32_bf16 v%d, s%d, v%d" % (vCS + t, sONES, b + 4 * t + j))
            for j in range(16):
                A.e("v_dot2c_f32_bf16 v%d, s%d, v%d" % (vSX + j % 2, sONES, XF + j))
                A.e("v_dot2c_f32_bf16 v%d, v%d, v%d" % (vSXX + j % 2, XF + j, XF + j))
        self.stamp()
        vTok, vHH = T, T + 1
        A.e("v_and_b32 v%d, 31, v1" % vTok)
        A.e("v_lshrrev_b32 v%d, 5, v1" % vHH)
        A.e("s_lshl_b32 s%d, s%d, 3" % (sT0, sW))
        A.e("s_add_u32 s%d, s%d, %d" % (sT0, sT0, L_CSP))
        A.e("v_lshlrev_b32 v%d, 5, v%d" % (T + 2, vTok))
        A.e("v_lshl_add_u32 v%d, v%d, 2, v%d" % (T + 2, vHH, T + 2))
        A.e("v_add_u32 v%d, s%d, v%d" % (T + 2, sT0, T + 2))
        for t in range(3):
            A.e("ds_write_b32 v%d, v%d offset:%d" % (T + 2, vCS + t, 1024 * t))
        A.e("v_add_f32 v%d, v%d, v%d" % (vSX, vSX, vSX + 1))
        A.e("v_add_f32 v%d, v%d, v%d" % (vSXX, vSXX, vSXX + 1))
        A.e("v_mov_b32 v%d, v%d" % (vSX + 1, vSX))
        A.e("v_mov_b32 v%d, v%d" % (vSXX + 1, vSXX))
        A.e("v_permlane32_swap_b32 v%d, v%d" % (vSX, vSX + 1))
        A.e("v_permlane32_swap_b32 v%d, v%d" % (vSXX, vSXX + 1))
        A.e("v_add_f32 v%d, v%d, v%d" % (vSX, vSX, vSX + 1))
        A.e("v_add_f32 v%d, v%d, v%d" % (vSXX, vSXX, vSXX + 1))
        A.e("v_mul_f32 v%d, %s, v%d" % (vSX, f32(1.0 / D_), vSX))
        A.e("v_mul_f32 v%d, %s, v%d" % (vSXX, f32(1.0 / D_), vSXX))
        A.e("v_fma_f32 v%d, -v%d, v%d, v%d" % (vSXX, vSX, vSX, vSXX))
        A.e("v_max_f32 v%d, 0, v%d" % (vSXX, vSXX))
        A.e("v_add_f32 v%d, %s, v%d" % (vSXX, f32(EPS), vSXX))
        vA, vB = vSXX + 1, vSX + 1
        A.e("v_rsq_f32 v%d, v%d" % (vA, vSXX))
        A.e("v_mul_f32 v%d, v%d, v%d" % (vB, vSX, vA))
        A.e("v_sub_f32 v%d, 0, v%d" % (vB, vB))
        A.e("v_cndmask_b32 v%d, v%d, v%d, s[%d:%d]" % (T + 3, vA, vB, sHI, sHI + 1))
        A.e("s_lshl_b32 s%d, s%d, 8" % (sT1, sW))
        A.e("v_lshl_add_u32 v%d, v1, 2, s%d" % (T + 4, sT1))
        A.e("v_add_u32 v%d, %d, v%d" % (T + 4, L_CSP, T + 4))
        A.e("ds_write_b32 v%d, v%d offset:%d" % (T + 4, T + 3, L_TS - L_CSP))
        A.wait_all(vm=False)
        A.e("s_barrier")
        A.e("v_lshlrev_b32 v%d, 5, v1" % (T + 5))
        A.e("v_add_u32 v%d, %d, v%d" % (T + 5, L_CSP, T + 5))
        A.e("ds_read_b128 v[%d:%d], v%d" % (XF, XF + 3, T + 5))
        A.e("ds_read_b128 v[%d:%d], v%d offset:16" % (XF + 4, XF + 7, T + 5))
        A.e("v_lshlrev_b32 v%d, 5, v%d" % (T + 5, vTok))
        A.e("v_add_u32 v%d, %d, v%d" % (T + 5, L_CSP + 2048, T + 5))
        A.e("ds_read_b128 v[%d:%d], v%d" % (XF + 8, XF + 11, T + 5))
        t2 = A.e("ds_read_b128 v[%d:%d], v%d offset:16" % (XF + 12, XF + 15, T + 5))
        A.e("v_lshl_add_u32 v%d, v%d, 4, s%d" % (T + 6, vHH, sT1))
        A.e("v_add_u32 v%d, %d, v%d" % (T + 6, L_CSP, T + 6))
        TA, TB = 160, 176
        for g in range(4):
            A.e("ds_read_b128 v[%d:%d], v%d offset:%d" % (TA + 4 * g, TA + 4 * g + 3, T + 6, L_TS - L_CSP + 32 * g))
            t3 = A.e("ds_read_b128 v[%d:%d], v%d offset:%d" % (TB + 4 * g, TB + 4 * g + 3, T + 6, L_TS - L_CSP + 128 + 32 * g))
        A.wait_lg(t2)
        for base in (XF, XF + 8):
            for j in range(4):
                A.e("v_add_f32 v%d, v%d, v%d" % (base + j, base + j, base + 4 + j))
            A.e("v_add_f32 v%d, v%d, v%d" % (base, base, base + 1))
            A.e("v_add_f32 v%d, v%d, v%d" % (base + 2, base + 2, base + 3))
            A.e("v_add_f32 v%d, v%d, v%d" % (base, base, base + 2))
        vCSV = XF + 8
        tw = A.e("ds_write_b32 v%d, v%d offset:%d" % (T + 4, XF, L_CSW - L_CSP))
        A.wait_lg(tw)
        CQ, CK = 192, 208
        for g in range(4):
            A.e("ds_read_b128 v[%d:%d], v%d offset:%d" % (CK + 4 * g, CK + 4 * g + 3, T + 6, L_CSW - L_CSP + 128 + 32 * g))
        for g in range(4):
            t4 = A.e("ds_read_b128 v[%d:%d], v%d offset:%d" % (CQ + 4 * g, CQ + 4 * g + 3, T + 6, L_CSW - L_CSP + 32 * g))
        KF, VF, QF = 112, 120, 128
        AV = ACC + 32
        for r in range(16):
            A.e("v_mul_f32 v%d, v%d, v%d" % (TB + r, TB + r, vCSV))
            A.e("v_fma_f32 v%d, v%d, v%d, v%d" % (AV + r, AV + r, TA + r, TB + r))
        A.e("v_cmp_eq_u32 vcc, 28, v%d" % vTok)
        A.e("v_mov_b32 v%d, s%d" % (T + 7, sONES))
        A.e("v_cndmask_b32 v%d, 0, v%d, vcc" % (T + 7, T + 7))
        for j in range(8):
            A.e("v_cvt_pk_bf16_f32 v%d, v%d, v%d" % (VF + j, AV + 2 * j, AV + 2 * j + 1))
        for j in range(8):
            A.e("v_cndmask_b32 v%d, v%d, v%d, s[%d:%d]" % (VF + j, VF + j, T + 7, sVP, sVP + 1))
        vL16 = 2
        A.e("v_lshlrev_b32 v%d, 4, v1" % vL16)
        A.e("s_lshl_b32 s%d, s%d, 6" % (sT2, sH))
        A.e("s_lshl_b32 s%d, s%d, 2" % (sT3, sQB))
        A.e("s_add_u32 s%d, s%d, s%d" % (sT2, sT2, sT3))
        A.e("s_add_u32 s%d, s%d, s%d" % (sT2, sT2, sW))
        A.e("s_lshl_b32 s%d, s%d, 12" % (sT3, sT2))
        A.e("s_add_u32 s%d, s%d, %d" % (sT3, sT3, WS_KV))
        A.e("buffer_store_dwordx4 v[%d:%d], v%d, s[%d:%d], s%d offen offset:2048 sc1" % (VF, VF + 3, vL16, SRD_WS, SRD_WS + 3, sT3))
        A.e("buffer_store_dwordx4 v[%d:%d], v%d, s[%d:%d], s%d offen offset:3072 sc1" % (VF + 4, VF + 7, vL16, SRD_WS, SRD_WS + 3, sT3))
        A.wait_lg(t4)
        AK = ACC + 16
        for r in range(16):
            A.e("v_mul_f32 v%d, v%d, v%d" % (CK + r, CK + r, vB))
            A.e("v_fma_f32 v%d, v%d, v%d, v%d" % (AK + r, AK + r, vA, CK + r))
        for j in range(8):
            A.e("v_cvt_pk_bf16_f32 v%d, v%d, v%d" % (KF + j, AK + 2 * j, AK + 2 * j + 1))
        A.e("v_mov_b32 v%d, 0x3f80" % (T + 7))
        A.e("v_mov_b32 v%d, 0" % (T + 9))
        A.e("v_cndmask_b32 v%d, v%d, v%d, s[%d:%d]" % (KF + 6, KF + 6, T + 7, sHI, sHI + 1))
        A.e("v_cndmask_b32 v%d, v%d, v%d, s[%d:%d]" % (KF + 7, KF + 7, T + 9, sHI, sHI + 1))
        A.e("buffer_store_dwordx4 v[%d:%d], v%d, s[%d:%d], s%d offen sc1" % (KF, KF + 3, vL16, SRD_WS, SRD_WS + 3, sT3))
        st = A.e("buffer_store_dwordx4 v[%d:%d], v%d, s[%d:%d], s%d offen offset:1024 sc1" % (KF + 4, KF + 7, vL16, SRD_WS, SRD_WS + 3, sT3))
        cq = DH ** -0.5 * math.log2(math.e)
        A.e("v_mul_f32 v%d, %s, v%d" % (vA, f32(cq), vA))
        A.e("v_mul_f32 v%d, %s, v%d" % (vB, f32(cq), vB))
        AQ = ACC
        for r in range(16):
            A.e("v_mul_f32 v%d, v%d, v%d" % (CQ + r, CQ + r, vB))
            A.e("v_fma_f32 v%d, v%d, v%d, v%d" % (AQ + r, AQ + r, vA, CQ + r))
        for j in range(8):
            A.e("v_cvt_pk_bf16_f32 v%d, v%d, v%d" % (QF + j, AQ + 2 * j, AQ + 2 * j + 1))
        A.e("v_cndmask_b32 v%d, v%d, v%d, s[%d:%d]" % (QF + 6, QF + 6, T + 9, sHI, sHI + 1))
        A.e("v_cndmask_b32 v%d, v%d, v%d, s[%d:%d]" % (QF + 7, QF + 7, T + 9, sHI, sHI + 1))
        A.e("v_mfma_f32_32x32x16_bf16 %s, %s, %s, 0" % (v(ACC, 16), v(KF, 4), v(QF, 4)))
        A.e("v_mfma_f32_32x32x16_bf16 %s, %s, %s, %s" % (v(ACC, 16), v(KF + 4, 4), v(QF + 4, 4), v(ACC, 16)))
        A.wait_vm(st)
        Ln = A.newlabel("nonce"); Lk = A.newlabel("nonceok")
        A.e("s_mov_b32 s%d, 0x400000" % sSPIN)
        A.label(Ln)
        A.e("v_readfirstlane_b32 s%d, v%d" % (sNONCE, T + 10))
        A.e("v_readfirstlane_b32 s%d, v%d" % (sNONCE + 1, T + 11))
        A.e("s_cmp_lg_u32 s%d, 0" % sNONCE)
        A.branch("s_cbranch_scc1 %s" % Lk)
        A.e("s_sub_u32 s%d, s%d, 1" % (sSPIN, sSPIN))
        A.e("s_cbranch_scc1 %s" % Lk)
        A.e("buffer_load_dwordx2 v[%d:%d], v%d, s[%d:%d], 0 offen sc1" % (T + 10, T + 11, T + 8, SRD_DBG, SRD_DBG + 3))
        A.e("s_waitcnt vmcnt(0)")
        A.branch("s_branch %s" % Ln)
        A.label(Lk)
        A.vm_done = A.vm
        A.e("s_lshl_b32 s%d, s%d, 7" % (sT2, sT2))
        self.signal(sT2, T + 12)
        self.stamp()
        A.e("v_max3_f32 v%d, v%d, v%d, v%d" % (ACC, ACC, ACC + 1, ACC + 2))
        for r in range(3, 15, 2):
            A.e("v_max3_f32 v%d, v%d, v%d, v%d" % (ACC, ACC, ACC + r, ACC + r + 1))
        A.e("v_max_f32 v%d, v%d, v%d" % (ACC, ACC, ACC + 15))
        A.e("v_mov_b32 v%d, v%d" % (ACC + 1, ACC))
        A.e("v_permlane32_swap_b32 v%d, v%d" % (ACC, ACC + 1))
        A.e("v_max_f32 v%d, v%d, v%d" % (ACC, ACC, ACC + 1))
        A.e("v_cvt_pk_bf16_f32 v%d, -v%d, 0" % (ACC, ACC))
        A.e("v_cndmask_b32 v%d, v%d, v%d, s[%d:%d]" % (QF + 6, QF + 6, ACC, sHI, sHI + 1))
        A.e("s_lshl_b32 s%d, s%d, 11" % (sT0, sW))
        A.e("s_add_u32 s%d, s%d, %d" % (sT0, sT0, L_QX))
        A.e("v_add_u32 v%d, s%d, v%d" % (T + 2, sT0, vL16))
        A.e("ds_write_b128 v%d, v[%d:%d]" % (T + 2, QF, QF + 3))
        A.e("ds_write_b128 v%d, v[%d:%d] offset:1024" % (T + 2, QF + 4, QF + 7))
        A.wait_all(vm=False)
        A.e("s_barrier")
        for i in range(4):
            A.e("s_xor_b32 s%d, s%d, %d" % (sT0, sW, i))
            A.e("s_lshl_b32 s%d, s%d, 11" % (sT0, sT0))
            A.e("s_add_u32 s%d, s%d, %d" % (sT0, sT0, L_QX))
            A.e("v_add_u32 v%d, s%d, v%d" % (T + 2 + i, sT0, vL16))
            A.e("ds_read_b128 v[%d:%d], v%d" % (16 + 8 * i, 19 + 8 * i, T + 2 + i))
            tq = A.e("ds_read_b128 v[%d:%d], v%d offset:1024" % (20 + 8 * i, 23 + 8 * i, T + 2 + i))
        A.wait_lg(tq)
        A.e("s_barrier")
        if self.stop == 1:
            A.e("s_lshl_b32 s%d, s%d, 6" % (sT2, sH))
            A.e("s_lshl_b32 s%d, s%d, 2" % (sT3, sQB))
            A.e("s_add_u32 s%d, s%d, s%d" % (sT2, sT2, sT3))
            A.e("s_add_u32 s%d, s%d, s%d" % (sT2, sT2, sW))
            A.e("s_lshl_b32 s%d, s%d, 11" % (sT2, sT2))
            A.e("s_add_u32 s%d, s%d, %d" % (sT2, sT2, WS_OF))
            for i in range(2):
                A.e("buffer_store_dwordx4 v[%d:%d], v%d, s[%d:%d], s%d offen offset:%d" % (16 + 4 * i, 19 + 4 * i, vL16, SRD_WS, SRD_WS + 3, sT2, 1024 * i))

    def p2(self):
        A = self.A
        vL16 = 2
        vWc = 4
        vW1 = 6
        vTrP = 7
        vTrQ = 8
        vFl = 9
        Q, O, SB, P, KV = 16, 48, 112, 144, 160
        WOV, XR = 208, 240
        vB1 = 248
        T = 152
        NR = 3
        A.e("s_min_u32 s%d, s%d, 6" % (sT2, sCB))
        A.e("s_min_u32 s%d, s%d, 13" % (sT3, sFB))
        A.e("v_lshrrev_b32 v%d, 2, v1" % T)
        A.e("v_and_b32 v%d, 3, v1" % (T + 1))
        A.e("v_lshlrev_b32 v%d, 4, v%d" % (T + 1, T + 1))
        A.e("v_mul_u32_u24 v%d, 896, v%d" % (T + 2, T))
        A.e("v_add_u32 v%d, v%d, v%d" % (T + 2, T + 2, T + 1))
        A.e("s_and_b32 s%d, s%d, 1" % (sT0, sW))
        A.e("s_lshl_b32 s%d, s%d, 6" % (sT0, sT0))
        A.e("s_xor_b32 s%d, s%d, 64" % (sT1, sT0))
        A.e("v_add_u32 v%d, s%d, v%d" % (vWc, sT0, T + 2))
        A.e("v_add_u32 v%d, s%d, v%d" % (vWc + 1, sT1, T + 2))
        A.e("v_mul_u32_u24 v%d, 3584, v%d" % (vW1, T))
        A.e("v_add_u32 v%d, v%d, v%d" % (vW1, vW1, T + 1))
        A.e("s_lshl_b32 s%d, s%d, 7" % (sT0, sT2))
        A.e("s_mul_i32 s%d, s%d, %d" % (sWOB, sW, 112 * 896))
        A.e("s_add_u32 s%d, s%d, s%d" % (sWOB, sWOB, sT0))
        A.e("s_mul_i32 s%d, s%d, %d" % (sW2B, sW, 448 * 896))
        A.e("s_add_u32 s%d, s%d, s%d" % (sW2B, sW2B, sT0))
        A.e("s_mul_i32 s%d, s%d, %d" % (sW1B, sW, 7 * 16 * 3584))
        A.e("s_lshl_b32 s%d, s%d, 8" % (sT0, sT3))
        A.e("s_add_u32 s%d, s%d, s%d" % (sW1B, sW1B, sT0))
        A.e("s_mul_i32 s%d, s%d, 12288" % (sTRN, sW))
        A.e("s_add_u32 s%d, s%d, %d" % (sTRN, sTRN, L_RX))
        A.e("s_mul_i32 s%d, s%d, 7168" % (sLW, sW))
        A.e("v_lshrrev_b32 v%d, 5, v1" % (T + 3))
        A.e("v_bfe_u32 v%d, v1, 2, 2" % (T + 4))
        A.e("v_lshl_add_u32 v%d, v%d, 2, v%d" % (T + 4, T + 3, T + 4))
        A.e("v_lshlrev_b32 v%d, 6, v%d" % (T + 4, T + 4))
        A.e("v_bfe_u32 v%d, v1, 4, 1" % (T + 5))
        A.e("v_lshl_add_u32 v%d, v%d, 5, v%d" % (T + 4, T + 5, T + 4))
        A.e("v_and_b32 v%d, 3, v1" % (T + 5))
        A.e("v_lshl_add_u32 v%d, v%d, 3, v%d" % (vTrQ, T + 5, T + 4))
        A.e("v_add_u32 v%d, s%d, v%d" % (vTrP, sTRN, vTrQ))
        A.e("v_and_b32 v%d, 31, v1" % (T + 4))
        A.e("v_mul_u32_u24 v%d, 896, v%d" % (T + 4, T + 4))
        A.e("v_lshl_add_u32 v%d, v%d, 3, v%d" % (T + 4, T + 3, T + 4))
        A.e("s_lshl_b32 s%d, s%d, 1" % (sT0, sRB64))
        A.e("s_lshr_b32 s%d, s%d, 1" % (sT1, sW))
        A.e("s_add_u32 s%d, s%d, s%d" % (sT0, sT0, sT1))
        A.e("s_mul_i32 s%d, s%d, %d" % (sT0, sT0, 32 * 896))
        A.e("s_lshl_b32 s%d, s%d, 7" % (sT1, sT2))
        A.e("s_add_u32 s%d, s%d, s%d" % (sT0, sT0, sT1))
        A.e("s_and_b32 s%d, s%d, 1" % (sT1, sW))
        A.e("s_lshl_b32 s%d, s%d, 6" % (sT1, sT1))
        A.e("s_add_u32 s%d, s%d, s%d" % (sT0, sT0, sT1))
        for g in range(4):
            A.e("buffer_load_dwordx2 v[%d:%d], v%d, s[%d:%d], s%d offen offset:%d" % (XR + 2 * g, XR + 2 * g + 1, T + 4, SRD_X, SRD_X + 3, sT0, 16 * g))
        A.e("v_and_b32 v%d, 31, v1" % (T + 4))
        A.e("v_lshlrev_b32 v%d, 1, v%d" % (T + 4, T + 4))
        A.e("s_lshl_b32 s%d, s%d, 8" % (sT0, sT3))
        A.e("s_lshl_b32 s%d, s%d, 6" % (sT1, sW))
        A.e("s_add_u32 s%d, s%d, s%d" % (sT0, sT0, sT1))
        A.e("buffer_load_ushort v%d, v%d, s[%d:%d], s%d offen" % (vB1, T + 4, SRD_B1, SRD_B1 + 3, sT0))
        def w1_unit(i):
            s_, ct = i // 4, i % 4
            ins = []
            if ct == 0:
                ins.append("s_add_u32 s%d, s%d, %d" % (sT3, sW1B, 16 * s_ * 3584))
            ins.append("s_add_u32 m0, s%d, %d" % (sLW, ct * SLOT + s_ * 1024 - 64 * ct))
            ins.append("buffer_load_dwordx4 v%d, s[%d:%d], s%d offen offset:%d lds" % (vW1, SRD_W1, SRD_W1 + 3, sT3, 64 * ct))
            return ins
        def st_unit(u):
            ins = []
            if u < 16:
                s_, ct = u // 2, u % 2
                base, imm, srd_ = sWOB, (28 * (s_ // 2) + 16 * (s_ % 2)) * 896, SRD_WO
                dst = v(WOV + 4 * u) if u < 8 else a(224 + 4 * (u - 8))
            else:
                s_, ct = (u - 16) // 2, (u - 16) % 2
                base, imm, srd_ = sW2B, 16 * s_ * 896, SRD_W2
                dst = a(4 * (u - 16))
            if ct == 0:
                ins.append("s_add_u32 s%d, s%d, %d" % (sT2, base, imm))
            ins.append("s_add_u32 m0, s%d, %d" % (sTRN, (u % 12) * 1024))
            ins.append("buffer_load_dwordx4 v%d, s[%d:%d], s%d offen lds" % (vWc + ct, srd_, srd_ + 3, sT2))
            k_, n_ = dst[0], int(dst[1:])
            rd = ["ds_read_b64_tr_b16 %s[%d:%d], v%d offset:%d" % (k_, n_, n_ + 1, vTrP, (u % 12) * 1024),
                  "ds_read_b64_tr_b16 %s[%d:%d], v%d offset:%d" % (k_, n_ + 2, n_ + 3, vTrP, (u % 12) * 1024 + 512)]
            return ins, rd
        NPRE = self.w1pre
        for i in range(NPRE):
            for x in w1_unit(i): A.e(x)
        A.e("s_lshl_b32 s%d, s%d, 6" % (sT0, sH))
        A.e("s_lshl_b32 s%d, s%d, 4" % (sT1, sW))
        A.e("s_add_u32 s%d, s%d, s%d" % (sT0, sT0, sT1))
        A.e("s_lshl_b32 s%d, s%d, 12" % (sKVB, sT0))
        A.e("s_add_u32 s%d, s%d, %d" % (sKVB, sKVB, WS_KV))
        A.e("s_lshl_b32 s%d, s%d, 7" % (sT0, sT0))
        A.e("v_lshlrev_b32 v%d, 7, v1" % vFl)
        A.e("v_add_u32 v%d, s%d, v%d" % (T, sT0, vFl))
        self.poll(T, 0xffff, T + 2, FLAG_A)
        self.stamp()
        def ldK(b):
            r = KV + 16 * (b % NR)
            return ["s_add_u32 s%d, s%d, %d" % (sT0, sKVB, b * 4096),
                    "buffer_load_dwordx4 v[%d:%d], v%d, s[%d:%d], s%d offen sc1" % (r, r + 3, vL16, SRD_WS, SRD_WS + 3, sT0),
                    "buffer_load_dwordx4 v[%d:%d], v%d, s[%d:%d], s%d offen offset:1024 sc1" % (r + 4, r + 7, vL16, SRD_WS, SRD_WS + 3, sT0)]
        def ldV(b):
            r = KV + 16 * (b % NR) + 8
            return ["buffer_load_dwordx4 v[%d:%d], v%d, s[%d:%d], s%d offen offset:2048 sc1" % (r, r + 3, vL16, SRD_WS, SRD_WS + 3, sT0),
                    "buffer_load_dwordx4 v[%d:%d], v%d, s[%d:%d], s%d offen offset:3072 sc1" % (r + 4, r + 7, vL16, SRD_WS, SRD_WS + 3, sT0)]
        tokK, tokV = {}, {}
        for b in range(NR):
            for x in ldK(b): tokK[b] = A.e(x) or tokK.get(b)
            for x in ldV(b): tokV[b] = A.e(x)
        MF = "v_mfma_f32_32x32x16_bf16"
        def smfma(i, half):
            b, q = i // 4, i % 4
            r = KV + 16 * (b % NR) + 4 * half; sb = SB + 16 * (i % 2)
            A.wait_vm(tokK[b])
            A.e("%s %s, %s, %s, %s" % (MF, v(sb, 16), v(r, 4), v(Q + 8 * q + 4 * half, 4), "0" if half == 0 else v(sb, 16)))
        def pv(i, half):
            b, q = i // 4, i % 4
            r = KV + 16 * (b % NR) + 8 + 4 * half; o = O + 16 * q
            A.wait_vm(tokV[b])
            A.e("%s %s, %s, %s, %s" % (MF, v(o, 16), v(r, 4), v(P + 4 * half, 4), "0" if (half == 0 and b == 0) else v(o, 16)))
        smfma(0, 0); smfma(0, 1)
        NST = 72 if self.stage else 0
        DLY = 8
        dma_tok = {}; rd_tok = {}
        nu = 0; nr = 0; nw1 = NPRE
        issued_at = {}
        def extras(i, slot):
            nonlocal nu, nr, nw1
            b, q = i // 4, i % 4
            if slot == 3 and q == 2 and b + NR < 16:
                for x in ldK(b + NR): tokK[b + NR] = A.e(x) or tokK.get(b + NR)
                return
            if slot == 2 and q == 0 and b >= 1 and b - 1 + NR < 16:
                for x in ldV(b - 1 + NR): tokV[b - 1 + NR] = A.e(x)
                return
            if slot == 1 or (slot == 4 and i % 4 == 1):
                if nu < NST and nu - nr < 12 and i < 64 - DLY + 2:
                    if nu >= 12: A.wait_lg(rd_tok[nu - 12])
                    ins, _ = st_unit(nu)
                    for x in ins: dma_tok[nu] = A.e(x) or dma_tok.get(nu)
                    issued_at[nu] = i; nu += 1
                return
            if slot == 3 or slot == 2:
                if nr < nu and issued_at[nr] + DLY <= i:
                    A.wait_vm(dma_tok[nr])
                    _, rd = st_unit(nr)
                    for x in rd: rd_tok[nr] = A.e(x)
                    nr += 1
                return
            if slot == 4 and nw1 < 28:
                for x in w1_unit(nw1): A.e(x)
                nw1 += 1
        for i in range(64):
            sb = SB + 16 * (i % 2)
            if i + 1 < 64: smfma(i + 1, 0)
            extras(i, 1)
            for r in range(0, 5): A.e("v_exp_f32 v%d, v%d" % (sb + r, sb + r))
            if i >= 1: pv(i - 1, 1)
            extras(i, 2)
            for r in range(5, 8): A.e("v_exp_f32 v%d, v%d" % (sb + r, sb + r))
            for j in range(4): A.e("v_cvt_pk_bf16_f32 v%d, v%d, v%d" % (P + j, sb + 2 * j, sb + 2 * j + 1))
            if i + 1 < 64: smfma(i + 1, 1)
            extras(i, 3)
            for r in range(8, 13): A.e("v_exp_f32 v%d, v%d" % (sb + r, sb + r))
            pv(i, 0)
            extras(i, 4)
            for r in range(13, 16): A.e("v_exp_f32 v%d, v%d" % (sb + r, sb + r))
            for j in range(4, 8): A.e("v_cvt_pk_bf16_f32 v%d, v%d, v%d" % (P + j, sb + 2 * j, sb + 2 * j + 1))
        pv(63, 1)
        while nw1 < 28:
            for x in w1_unit(nw1): A.e(x)
            nw1 += 1
        while nr < NST:
            while nu < NST and nu - nr < 12:
                if nu >= 12: A.wait_lg(rd_tok[nu - 12])
                ins, _ = st_unit(nu)
                for x in ins: dma_tok[nu] = A.e(x) or dma_tok.get(nu)
                nu += 1
            A.wait_vm(dma_tok[nr])
            _, rd = st_unit(nr)
            for x in rd: rd_tok[nr] = A.e(x)
            nr += 1
        self.stamp()
        A.wait_all(vm=True, lg=True)
        A.e("v_add_u32 v%d, s%d, v%d" % (T, sTRN, vL16))
        for i in range(1, 4):
            for g in range(4):
                A.e("ds_write_b128 v%d, v[%d:%d] offset:%d" % (T, O + 16 * i + 4 * g, O + 16 * i + 4 * g + 3, (i - 1) * 4096 + g * 1024))
        for i in range(1, 4):
            A.e("s_xor_b32 s%d, s%d, %d" % (sT0, sW, i))
            A.e("s_mul_i32 s%d, s%d, 12288" % (sT0, sT0))
            A.e("s_add_u32 s%d, s%d, %d" % (sT0, sT0, L_RX + (i - 1) * 4096))
            A.e("v_add_u32 v%d, s%d, v%d" % (10 + i, sT0, vL16))
        A.wait_all(vm=False)
        A.e("s_barrier")
        tk = {}
        for i in range(1, 4):
            for g in range(4):
                tk[i] = A.e("ds_read_b128 v[%d:%d], v%d offset:%d" % (O + 16 * i + 4 * g, O + 16 * i + 4 * g + 3, 10 + i, g * 1024))
        for i in range(1, 4):
            A.wait_lg(tk[i])
            for r in range(0, 16, 2):
                A.e("v_pk_add_f32 v[%d:%d], v[%d:%d], v[%d:%d]" % (O + r, O + r + 1, O + r, O + r + 1, O + 16 * i + r, O + 16 * i + r + 1))
        Lnorm = A.newlabel("norm")
        def get_l():
            A.e("v_mov_b32 v%d, v%d" % (T, O + 12))
            A.e("v_mov_b32 v%d, v%d" % (T + 1, O + 12))
            A.e("v_permlane32_swap_b32 v%d, v%d" % (T, T + 1))
        get_l()
        A.e("v_max3_f32 v%d, |v%d|, |v%d|, |v%d|" % (T + 2, O, O + 1, O + 2))
        for r in range(3, 15, 2):
            A.e("v_max3_f32 v%d, v%d, |v%d|, |v%d|" % (T + 2, T + 2, O + r, O + r + 1))
        A.e("v_max_f32 v%d, v%d, |v%d|" % (T + 2, T + 2, O + 15))
        A.e("v_add_f32 v%d, v%d, v%d" % (T + 3, O, O + 1))
        for r in range(2, 16):
            A.e("v_add_f32 v%d, v%d, v%d" % (T + 3, T + 3, O + r))
        A.e("v_mov_b32 v%d, %s" % (T + 4, f32(2.0 ** 64)))
        A.e("v_cmp_lt_f32 s[%d:%d], v%d, v%d" % (4, 5, T + 1, T + 4))
        A.e("v_mov_b32 v%d, %s" % (T + 4, f32(2.0 ** -64)))
        A.e("v_cmp_gt_f32 s[%d:%d], v%d, v%d" % (6, 7, T + 1, T + 4))
        A.e("v_mov_b32 v%d, %s" % (T + 4, f32(2.0 ** 120)))
        A.e("v_cmp_lt_f32 vcc, v%d, v%d" % (T + 2, T + 4))
        A.e("s_and_b64 s[4:5], s[4:5], s[6:7]")
        A.e("s_and_b64 s[4:5], s[4:5], vcc")
        A.e("v_cmp_o_f32 vcc, v%d, v%d" % (T + 3, T + 3))
        A.e("s_and_b64 s[4:5], s[4:5], vcc")
        A.e("s_cmp_eq_u64 s[4:5], -1")
        if self.force_fb:
            A.e("s_cmp_eq_u32 s2, 0x7fff")
        A.branch("s_cbranch_scc1 %s" % Lnorm)
        A.e("v_mov_b32 v%d, 0" % T)
        A.e("v_cndmask_b32 v%d, v%d, v%d, s[%d:%d]" % (Q + 6, Q + 6, T, sHI, sHI + 1))
        A.e("v_mov_b32 v%d, 0xff800000" % (T + 5))
        A.e("s_lshl_b32 s%d, s%d, 18" % (sT1, sH))
        A.e("s_add_u32 s%d, s%d, %d" % (sT1, sT1, WS_KV))
        A.e("s_mov_b32 s%d, s%d" % (sT0, sT1))
        A.e("s_add_u32 s%d, s%d, %d" % (sT2, sT1, 64 * 4096))
        L1 = A.newlabel("fb1"); L2 = A.newlabel("fb2")
        A.label(L1)
        A.e("buffer_load_dwordx4 v[%d:%d], v%d, s[%d:%d], s%d offen sc1" % (KV, KV + 3, vL16, SRD_WS, SRD_WS + 3, sT0))
        A.e("buffer_load_dwordx4 v[%d:%d], v%d, s[%d:%d], s%d offen offset:1024 sc1" % (KV + 4, KV + 7, vL16, SRD_WS, SRD_WS + 3, sT0))
        A.e("s_waitcnt vmcnt(0)")
        A.e("%s %s, %s, %s, 0" % (MF, v(SB, 16), v(KV, 4), v(Q, 4)))
        A.e("%s %s, %s, %s, %s" % (MF, v(SB, 16), v(KV + 4, 4), v(Q + 4, 4), v(SB, 16)))
        for r in range(0, 16, 2):
            A.e("v_max3_f32 v%d, v%d, v%d, v%d" % (T + 5, T + 5, SB + r, SB + r + 1))
        A.e("s_add_u32 s%d, s%d, 4096" % (sT0, sT0))
        A.e("s_cmp_lt_u32 s%d, s%d" % (sT0, sT2))
        A.branch("s_cbranch_scc1 %s" % L1)
        A.e("v_mov_b32 v%d, v%d" % (T + 6, T + 5))
        A.e("v_permlane32_swap_b32 v%d, v%d" % (T + 5, T + 6))
        A.e("v_max_f32 v%d, v%d, v%d" % (T + 5, T + 5, T + 6))
        for r in range(16): A.e("v_mov_b32 v%d, 0" % (O + r))
        A.e("s_mov_b32 s%d, s%d" % (sT0, sT1))
        A.label(L2)
        for j in range(4):
            A.e("buffer_load_dwordx4 v[%d:%d], v%d, s[%d:%d], s%d offen offset:%d sc1" % (KV + 4 * j, KV + 4 * j + 3, vL16, SRD_WS, SRD_WS + 3, sT0, 1024 * j))
        A.e("s_waitcnt vmcnt(0)")
        A.e("%s %s, %s, %s, 0" % (MF, v(SB, 16), v(KV, 4), v(Q, 4)))
        A.e("%s %s, %s, %s, %s" % (MF, v(SB, 16), v(KV + 4, 4), v(Q + 4, 4), v(SB, 16)))
        for r in range(16): A.e("v_sub_f32 v%d, v%d, v%d" % (SB + r, SB + r, T + 5))
        for r in range(16): A.e("v_exp_f32 v%d, v%d" % (SB + r, SB + r))
        for j in range(8): A.e("v_cvt_pk_bf16_f32 v%d, v%d, v%d" % (P + j, SB + 2 * j, SB + 2 * j + 1))
        A.e("%s %s, %s, %s, %s" % (MF, v(O, 16), v(KV + 8, 4), v(P, 4), v(O, 16)))
        A.e("%s %s, %s, %s, %s" % (MF, v(O, 16), v(KV + 12, 4), v(P + 4, 4), v(O, 16)))
        A.e("s_add_u32 s%d, s%d, 4096" % (sT0, sT0))
        A.e("s_cmp_lt_u32 s%d, s%d" % (sT0, sT2))
        A.branch("s_cbranch_scc1 %s" % L2)
        A.fence()
        get_l()
        A.vm_done = A.vm
        A.label(Lnorm)
        A.e("v_rcp_f32 v%d, v%d" % (T, T + 1))
        for r in range(16): A.e("v_mul_f32 v%d, v%d, v%d" % (O + r, O + r, T))
        for j in range(8): A.e("v_cvt_pk_bf16_f32 v%d, v%d, v%d" % (P + j, O + 2 * j, O + 2 * j + 1))
        A.e("v_mov_b32 v%d, 0" % T)
        A.e("v_cndmask_b32 v%d, v%d, v%d, s[%d:%d]" % (P + 6, P + 6, T, sHI, sHI + 1))
        A.e("v_cndmask_b32 v%d, v%d, v%d, s[%d:%d]" % (P + 7, P + 7, T, sHI, sHI + 1))
        A.e("s_lshl_b32 s%d, s%d, 2" % (sT0, sQB))
        A.e("s_add_u32 s%d, s%d, s%d" % (sT0, sT0, sW))
        A.e("s_lshl_b32 s%d, s%d, 4" % (sT0, sT0))
        A.e("s_add_u32 s%d, s%d, s%d" % (sT0, sT0, sH))
        A.e("s_lshl_b32 s%d, s%d, 11" % (sT1, sT0))
        A.e("s_add_u32 s%d, s%d, %d" % (sT1, sT1, WS_OF))
        A.e("buffer_store_dwordx4 v[%d:%d], v%d, s[%d:%d], s%d offen sc1" % (P, P + 3, vL16, SRD_WS, SRD_WS + 3, sT1))
        st = A.e("buffer_store_dwordx4 v[%d:%d], v%d, s[%d:%d], s%d offen offset:1024 sc1" % (P + 4, P + 7, vL16, SRD_WS, SRD_WS + 3, sT1))
        A.e("s_lshl_b32 s%d, s%d, 7" % (sT0, sT0))
        A.e("s_add_u32 s%d, s%d, %d" % (sT0, sT0, FLAG_B))
        A.wait_vm(st)
        self.signal(sT0, T)
        self.stamp()

    def p3(self):
        A = self.A
        MF = "v_mfma_f32_32x32x16_bf16"
        vL16, vTrQ, vFl = 2, 8, 9
        WOV, XR, vB1, vCS1 = 208, 240, 248, 249
        ACC, OFR, T = 48, 112, 176
        A.e("s_mul_i32 s%d, s%d, %d" % (sT0, sW, SLOT))
        A.e("v_add_u32 v%d, s%d, v%d" % (T, sT0, vTrQ))
        A.e("v_mov_b32 v%d, 0" % vCS1)
        A.e("v_mov_b32 v%d, 0" % (vCS1 + 1))
        for grp in range(4):
            tk = []
            for s_ in range(7):
                ks = grp * 7 + s_
                A.e("ds_read_b64_tr_b16 v[%d:%d], v%d offset:%d" % (OFR + 4 * s_, OFR + 4 * s_ + 1, T, ks * 1024))
                tk.append(A.e("ds_read_b64_tr_b16 v[%d:%d], v%d offset:%d" % (OFR + 4 * s_ + 2, OFR + 4 * s_ + 3, T, ks * 1024 + 512)))
            for s_ in range(7):
                A.wait_lg(tk[s_])
                for j in range(4):
                    A.e("v_dot2c_f32_bf16 v%d, s%d, v%d" % (vCS1 + j % 2, sONES, OFR + 4 * s_ + j))
        A.e("v_add_f32 v%d, v%d, v%d" % (vCS1, vCS1, vCS1 + 1))
        A.e("v_mov_b32 v%d, v%d" % (vCS1 + 1, vCS1))
        A.e("v_permlane32_swap_b32 v%d, v%d" % (vCS1, vCS1 + 1))
        A.e("v_add_f32 v%d, v%d, v%d" % (vCS1, vCS1, vCS1 + 1))
        A.e("v_lshlrev_b32 v%d, 16, v%d" % (vB1, vB1))
        A.e("v_cndmask_b32 v%d, v%d, v%d, s[%d:%d]" % (vCS1, vCS1, vB1, sHI, sHI + 1))
        Lskip = "L_p3_skip"
        A.e("s_cmp_ge_u32 s%d, 7" % sCB)
        A.branch("s_cbranch_scc1 %s" % Lskip)
        A.e("v_lshrrev_b32 v%d, 2, v1" % T)
        A.e("v_and_b32 v%d, 3, v1" % (T + 1))
        A.e("v_lshl_add_u32 v%d, v%d, 4, v%d" % (T, T, T + 1))
        A.e("v_lshlrev_b32 v%d, 7, v%d" % (14, T))
        A.e("s_lshl_b32 s%d, s%d, 5" % (sT0, sRB64))
        A.e("s_lshl_b32 s%d, s%d, 2" % (sT1, sW))
        A.e("s_add_u32 s%d, s%d, s%d" % (sT0, sT0, sT1))
        A.e("s_lshl_b32 s%d, s%d, 7" % (sT0, sT0))
        A.e("v_add_u32 v%d, s%d, v14" % (T, sT0))
        A.e("s_lshr_b32 s%d, s%d, 1" % (sT1, sW))
        A.e("s_lshl_b32 s%d, s%d, 1" % (sT2, sRB64))
        A.e("s_add_u32 s%d, s%d, s%d" % (sXB, sT2, sT1))
        A.e("s_xor_b32 s%d, s%d, 1" % (sWB, sXB))
        for (dst, src) in ((sT2, sXB), (sT3, sWB)):
            A.e("s_lshl_b32 s%d, s%d, 15" % (dst, src))
            A.e("s_lshl_b32 s%d, s%d, 13" % (sT1, sW))
            A.e("s_add_u32 s%d, s%d, s%d" % (dst, dst, sT1))
            A.e("s_add_u32 s%d, s%d, %d" % (dst, dst, WS_OF))
        A.e("s_add_u32 s4, s%d, 4096" % sT2)
        A.e("s_add_u32 s5, s%d, 4096" % sT3)
        self.poll(T, 0xff, T + 2, FLAG_B)
        self.stamp()
        tk = {}
        for s_ in range(8):
            for r in range(2):
                so = (sT2, sT3)[r] if s_ < 4 else (4, 5)[r]
                d = OFR + 8 * s_ + 4 * r
                tk[(s_, r)] = A.e("buffer_load_dwordx4 v[%d:%d], v%d, s[%d:%d], s%d offen offset:%d sc1" % (d, d + 3, vL16, SRD_WS, SRD_WS + 3, so, (s_ % 4) * 1024))
        for s_ in range(8):
            for r in range(2):
                A.wait_vm(tk[(s_, r)])
                for c in range(2):
                    u = 2 * s_ + c
                    w = v(WOV + 4 * u, 4) if u < 8 else a(224 + 4 * (u - 8), 4)
                    acc = ACC + 16 * (2 * r + c)
                    A.e("%s %s, %s, %s, %s" % (MF, v(acc, 16), w, v(OFR + 8 * s_ + 4 * r, 4), "0" if s_ == 0 else v(acc, 16)))
        A.e("s_barrier")
        A.e("v_add_u32 v%d, s%d, v%d" % (T, sTRN, vL16))
        for i in range(1, 4):
            for g in range(4):
                A.e("ds_write_b128 v%d, v[%d:%d] offset:%d" % (T, ACC + 16 * i + 4 * g, ACC + 16 * i + 4 * g + 3, (i - 1) * 4096 + g * 1024))
        for j in range(8):
            A.e("v_lshlrev_b32 v%d, 16, v%d" % (T + 2, XR + j))
            A.e("v_and_b32 v%d, 0xffff0000, v%d" % (T + 3, XR + j))
            A.e("v_add_f32 v%d, v%d, v%d" % (ACC + 2 * j, ACC + 2 * j, T + 2))
            A.e("v_add_f32 v%d, v%d, v%d" % (ACC + 2 * j + 1, ACC + 2 * j + 1, T + 3))
        A.wait_all(vm=False)
        A.e("s_barrier")
        tk = {}
        for i in range(1, 4):
            for g in range(4):
                tk[i] = A.e("ds_read_b128 v[%d:%d], v%d offset:%d" % (ACC + 16 * i + 4 * g, ACC + 16 * i + 4 * g + 3, 10 + i, g * 1024))
        for i in range(1, 4):
            A.wait_lg(tk[i])
            for r in range(0, 16, 2):
                A.e("v_pk_add_f32 v[%d:%d], v[%d:%d], v[%d:%d]" % (ACC + r, ACC + r + 1, ACC + r, ACC + r + 1, ACC + 16 * i + r, ACC + 16 * i + r + 1))
        for j in range(8):
            A.e("v_cvt_pk_bf16_f32 v%d, v%d, v%d" % (XR + j, ACC + 2 * j, ACC + 2 * j + 1))
        A.e("s_lshl_b32 s%d, s%d, 1" % (sT0, sCB))
        A.e("s_and_b32 s%d, s%d, 1" % (sT1, sW))
        A.e("s_add_u32 s%d, s%d, s%d" % (sT0, sT0, sT1))
        A.e("s_mul_i32 s%d, s%d, 14" % (sT1, sXB))
        A.e("s_add_u32 s%d, s%d, s%d" % (sT1, sT1, sT0))
        A.e("s_lshl_b32 s%d, s%d, 11" % (sT2, sT1))
        A.e("s_add_u32 s%d, s%d, %d" % (sT2, sT2, WS_HF))
        A.e("buffer_store_dwordx4 v[%d:%d], v%d, s[%d:%d], s%d offen sc1" % (XR, XR + 3, vL16, SRD_WS, SRD_WS + 3, sT2))
        A.e("buffer_store_dwordx4 v[%d:%d], v%d, s[%d:%d], s%d offen offset:1024 sc1" % (XR + 4, XR + 7, vL16, SRD_WS, SRD_WS + 3, sT2))
        A.e("v_mov_b32 v%d, 0" % (T + 2))
        A.e("v_mov_b32 v%d, 0" % (T + 3))
        for j in range(8):
            A.e("v_dot2c_f32_bf16 v%d, s%d, v%d" % (T + 2, sONES, XR + j))
            A.e("v_dot2c_f32_bf16 v%d, v%d, v%d" % (T + 3, XR + j, XR + j))
        A.e("v_mov_b32 v%d, v%d" % (T + 4, T + 2))
        A.e("v_mov_b32 v%d, v%d" % (T + 5, T + 3))
        A.e("v_permlane32_swap_b32 v%d, v%d" % (T + 2, T + 4))
        A.e("v_permlane32_swap_b32 v%d, v%d" % (T + 3, T + 5))
        A.e("v_add_f32 v%d, v%d, v%d" % (T + 2, T + 2, T + 4))
        A.e("v_add_f32 v%d, v%d, v%d" % (T + 3, T + 3, T + 5))
        A.e("v_lshlrev_b32 v%d, 3, v1" % (T + 4))
        A.e("s_lshl_b32 s%d, s%d, 8" % (sT2, sT1))
        A.e("s_add_u32 s%d, s%d, %d" % (sT2, sT2, WS_ST))
        A.e("s_mov_b64 exec, 0xffffffff")
        st = A.e("buffer_store_dwordx2 v[%d:%d], v%d, s[%d:%d], s%d offen sc1" % (T + 2, T + 3, T + 4, SRD_WS, SRD_WS + 3, sT2))
        A.e("s_mov_b64 exec, -1")
        A.e("s_lshl_b32 s%d, s%d, 4" % (sT1, sXB))
        A.e("s_add_u32 s%d, s%d, s%d" % (sT1, sT1, sT0))
        A.e("s_lshl_b32 s%d, s%d, 7" % (sT1, sT1))
        A.e("s_add_u32 s%d, s%d, %d" % (sT1, sT1, FLAG_C))
        A.wait_vm(st)
        self.signal(sT1, T + 6)
        if self.stamps:
            A.branch("s_branch L_p3_done")
            A.label(Lskip)
            self.nst -= 1; self.stamp()
            A.label("L_p3_done")
        else:
            A.label(Lskip)
        self.stamp()

    def p4(self):
        A = self.A
        MF = "v_mfma_f32_32x32x16_bf16"
        vL16, vTrQ, vFl = 2, 8, 9
        vCS1 = 249
        HFR, ACC, WF, T = 16, 128, 192, 224
        CB = 250
        Lskip = "L_p4_skip"
        A.e("s_cmp_ge_u32 s%d, 14" % sFB)
        A.branch("s_cbranch_scc1 %s" % Lskip)
        A.e("s_barrier")
        A.e("s_lshl_b32 s%d, s%d, 8" % (sT0, sW))
        A.e("s_add_u32 s%d, s%d, %d" % (sT0, sT0, L_RX))
        A.e("v_lshl_add_u32 v%d, v1, 2, s%d" % (T, sT0))
        A.e("ds_write_b32 v%d, v%d" % (T, vCS1))
        A.e("s_lshl_b32 s%d, s%d, 2" % (sKVB, sRB128))
        A.e("s_add_u32 s%d, s%d, s%d" % (sKVB, sKVB, sW))
        A.e("s_lshl_b32 s%d, s%d, 11" % (sT0, sKVB))
        A.e("v_add_u32 v%d, s%d, v%d" % (T, sT0, vFl))
        A.e("s_mul_i32 s%d, s%d, %d" % (sT2, sKVB, 28 * 1024))
        A.e("s_add_u32 s%d, s%d, %d" % (sT2, sT2, WS_HF))
        A.e("s_mul_i32 s%d, s%d, %d" % (sT3, sKVB, 14 * 256))
        A.e("s_add_u32 s%d, s%d, %d" % (sT3, sT3, WS_ST))
        A.e("v_lshlrev_b32 v%d, 3, v1" % (T + 4))
        A.e("v_add_u32 v%d, %d, v%d" % (15, 2 * SLOT, vTrQ))
        A.e("v_lshrrev_b32 v%d, 5, v1" % (T + 5))
        A.e("v_lshlrev_b32 v%d, 4, v%d" % (T + 5, T + 5))
        A.e("v_add_u32 v%d, %d, v%d" % (3, L_RX, T + 5))
        A.wait_all(vm=False)
        A.e("s_barrier")
        self.poll(T, 0x3fff, T + 2, FLAG_C)
        self.stamp()
        ht = {}
        STR = WF + 16
        STR = ACC + 48
        for i in range(7):
            stt = A.e("buffer_load_dwordx2 v[%d:%d], v%d, s[%d:%d], s%d offen offset:%d sc1" % (STR + 2 * i, STR + 2 * i + 1, T + 4, SRD_WS, SRD_WS + 3, sT3, 512 * i))
        for ks in range(28):
            if ks % 4 == 0 and ks:
                A.e("s_add_u32 s%d, s%d, 4096" % (sT2, sT2))
            ht[ks] = A.e("buffer_load_dwordx4 v[%d:%d], v%d, s[%d:%d], s%d offen offset:%d sc1" % (HFR + 4 * ks, HFR + 4 * ks + 3, vL16, SRD_WS, SRD_WS + 3, sT2, (ks % 4) * 1024))
        def rdw(ct, ks, dst):
            base = vTrQ if ct < 2 else 15
            off = (ct % 2) * SLOT + ks * 1024
            A.e("ds_read_b64_tr_b16 v[%d:%d], v%d offset:%d" % (dst, dst + 1, base, off))
            return A.e("ds_read_b64_tr_b16 v[%d:%d], v%d offset:%d" % (dst + 2, dst + 3, base, off + 512))
        vRR, vNM = T + 6, T + 7
        wt = {}
        for ks in range(2):
            for c in range(2): wt[(c, ks)] = rdw(c, ks, WF + 8 * (ks % 4) + 4 * c)
        A.wait_vm(stt)
        for i in range(1, 7):
            A.e("v_add_f32 v%d, v%d, v%d" % (STR, STR, STR + 2 * i))
            A.e("v_add_f32 v%d, v%d, v%d" % (STR + 1, STR + 1, STR + 2 * i + 1))
        A.e("v_mov_b32 v%d, v%d" % (STR + 2, STR))
        A.e("v_mov_b32 v%d, v%d" % (STR + 3, STR + 1))
        A.e("v_permlane32_swap_b32 v%d, v%d" % (STR, STR + 2))
        A.e("v_permlane32_swap_b32 v%d, v%d" % (STR + 1, STR + 3))
        A.e("v_add_f32 v%d, v%d, v%d" % (STR, STR, STR + 2))
        A.e("v_add_f32 v%d, v%d, v%d" % (STR + 1, STR + 1, STR + 3))
        A.e("v_mul_f32 v%d, %s, v%d" % (vNM, f32(-1.0 / D_), STR))
        A.e("v_mul_f32 v%d, %s, v%d" % (STR + 1, f32(1.0 / D_), STR + 1))
        A.e("v_fma_f32 v%d, -v%d, v%d, v%d" % (STR + 1, vNM, vNM, STR + 1))
        A.e("v_max_f32 v%d, 0, v%d" % (STR + 1, STR + 1))
        A.e("v_add_f32 v%d, %s, v%d" % (STR + 2, f32(EPS), STR + 1))
        A.e("v_rsq_f32 v%d, v%d" % (STR + 3, STR + 2))
        A.e("v_mul_f32 v%d, v%d, v%d" % (STR + 2, STR + 3, STR + 3))
        A.e("v_mul_f32 v%d, v%d, v%d" % (STR + 2, STR + 2, STR + 1))
        A.e("v_add_f32 v%d, %s, v%d" % (STR + 2, f32(EPS), STR + 2))
        A.e("v_rsq_f32 v%d, v%d" % (STR + 2, STR + 2))
        A.e("v_mul_f32 v%d, v%d, v%d" % (vRR, STR + 2, STR + 3))
        for ks in range(28):
            if ks + 2 < 28:
                for c in range(2): wt[(c, ks + 2)] = rdw(c, ks + 2, WF + 8 * ((ks + 2) % 4) + 4 * c)
            A.wait_both(ht[ks], wt[(1, ks)])
            for c in range(2):
                acc = ACC + 16 * c
                A.e("%s %s, %s, %s, %s" % (MF, v(acc, 16), v(WF + 8 * (ks % 4) + 4 * c, 4), v(HFR + 4 * ks, 4), "0" if ks == 0 else v(acc, 16)))
        A.e("s_mul_i32 s%d, s%d, 112" % (sT2, sKVB))
        A.e("s_lshl_b32 s%d, s%d, 3" % (sT0, sFB))
        A.e("s_add_u32 s%d, s%d, s%d" % (sT2, sT2, sT0))
        A.e("s_lshl_b32 s%d, s%d, 10" % (sT2, sT2))
        A.e("s_add_u32 s%d, s%d, %d" % (sT2, sT2, WS_HID))
        A.e("s_add_u32 s%d, s%d, 4096" % (sT3, sT2))
        c1 = -2.0 * math.sqrt(2.0 / math.pi) * math.log2(math.e); c2 = c1 * 0.044715
        A.e("s_mov_b32 s4, %s" % f32(c1))
        A.e("s_mov_b32 s5, %s" % f32(c2))
        A.e("v_mov_b32 v251, s4")
        CSR = T + 10
        def epi(ct):
            acc = ACC + 16 * ct
            out = []
            for g in range(4):
                cb = 208 + 8 * (g % 2)
                cb = 232 + 0
                out.append(("rd", g))
                for r in range(4):
                    x = acc + 4 * g + r; t = T + (r % 2) * 2; t2 = t + 1
                    out.append("v_fma_f32 v%d, v%d, v%d, v%d" % (x, vNM, cb + r, x))
                    out.append("v_fma_f32 v%d, v%d, v%d, v%d" % (x, x, vRR, cb + 4 + r))
                for r in range(4):
                    x = acc + 4 * g + r; t = 252 + r
                    out.append("v_mul_f32 v%d, v%d, v%d" % (t, x, x))
                    out.append("v_fma_f32 v%d, v%d, s5, v251" % (t, t))
                    out.append("v_mul_f32 v%d, v%d, v%d" % (t, t, x))
                for r in range(4):
                    out.append("v_exp_f32 v%d, v%d" % (252 + r, 252 + r))
                for r in range(4):
                    out.append("v_add_f32 v%d, 1.0, v%d" % (252 + r, 252 + r))
                for r in range(4):
                    out.append("v_rcp_f32 v%d, v%d" % (252 + r, 252 + r))
                for r in range(4):
                    x = acc + 4 * g + r
                    out.append("v_mul_f32 v%d, v%d, v%d" % (x, x, 252 + r))
                out.append("v_cvt_pk_bf16_f32 v%d, v%d, v%d" % (acc + 2 * g, acc + 4 * g, acc + 4 * g + 1))
                out.append("v_cvt_pk_bf16_f32 v%d, v%d, v%d" % (acc + 2 * g + 1, acc + 4 * g + 2, acc + 4 * g + 3))
                if g % 2 == 1:
                    t_ = g // 2
                    so = sT2 if ct < 2 else sT3
                    out.append("buffer_store_dwordx4 v[%d:%d], v%d, s[%d:%d], s%d offen offset:%d sc1" % (acc + 4 * t_, acc + 4 * t_ + 3, vL16, SRD_WS, SRD_WS + 3, so, ((2 * ct + t_) % 4) * 1024))
            return out
        def run_epi_item(ct, it):
            if isinstance(it, tuple):
                g = it[1]
                A.e("ds_read_b128 v[232:235], v3 offset:%d" % (ct * 256 + 32 * g))
                tk = A.e("ds_read_b128 v[236:239], v3 offset:%d" % (ct * 256 + 128 + 32 * g))
                A.wait_lg(tk)
                return None
            return A.e(it)
        last = None
        for ct in (2, 3):
            ep = epi(ct - 2)
            per = (len(ep) + 27) // 28
            wt = {}
            for ks in range(3): wt[ks] = rdw(ct, ks, WF + 4 * (ks % 4))
            for ks in range(28):
                A.wait_lg(wt[ks])
                acc = ACC + 16 * ct
                A.e("%s %s, %s, %s, %s" % (MF, v(acc, 16), v(WF + 4 * (ks % 4), 4), v(HFR + 4 * ks, 4), "0" if ks == 0 else v(acc, 16)))
                if ks + 3 < 28: wt[ks + 3] = rdw(ct, ks + 3, WF + 4 * ((ks + 3) % 4))
                for _ in range(per):
                    if ep: run_epi_item(ct - 2, ep.pop(0))
            while ep: run_epi_item(ct - 2, ep.pop(0))
        for ct in (2, 3):
            for it in epi(ct):
                r_ = run_epi_item(ct, it)
                if isinstance(it, str) and it.startswith("buffer_store"): last = r_
        A.e("s_lshl_b32 s%d, s%d, 4" % (sT1, sKVB))
        A.e("s_add_u32 s%d, s%d, s%d" % (sT1, sT1, sFB))
        A.e("s_lshl_b32 s%d, s%d, 7" % (sT1, sT1))
        A.e("s_add_u32 s%d, s%d, %d" % (sT1, sT1, FLAG_D))
        A.wait_vm(last)
        self.signal(sT1, T)
        if self.stamps:
            A.branch("s_branch L_p4_done")
            A.label(Lskip)
            self.nst -= 1; self.stamp()
            A.label("L_p4_done")
        else:
            A.label(Lskip)
        self.stamp()

    def p5(self):
        A = self.A
        MF = "v_mfma_f32_32x32x16_bf16"
        vL16 = 2
        XR = 240
        ACC, GF, T, B2 = 16, 80, 224, 232
        NG = 36
        Lskip = "L_p5_skip"
        A.e("s_cmp_ge_u32 s%d, 7" % sCB)
        A.branch("s_cbranch_scc1 %s" % Lskip)
        A.e("v_lshrrev_b32 v%d, 5, v1" % T)
        A.e("v_lshlrev_b32 v%d, 3, v%d" % (T, T))
        A.e("s_lshl_b32 s%d, s%d, 7" % (sT0, sCB))
        A.e("s_and_b32 s%d, s%d, 1" % (sT1, sW))
        A.e("s_lshl_b32 s%d, s%d, 6" % (sT1, sT1))
        A.e("s_add_u32 s%d, s%d, s%d" % (sT0, sT0, sT1))
        for g in range(4):
            A.e("buffer_load_dwordx2 v[%d:%d], v%d, s[%d:%d], s%d offen offset:%d" % (B2 + 2 * g, B2 + 2 * g + 1, T, SRD_B2, SRD_B2 + 3, sT0, 16 * g))
        A.e("s_mul_i32 s%d, s%d, 28" % (sT1, sW))
        A.e("s_lshr_b32 s%d, s%d, 3" % (sT2, sT1))
        A.e("s_lshl_b32 s%d, s%d, 5" % (sT0, sRB64))
        A.e("s_add_u32 s%d, s%d, s%d" % (sT0, sT0, sT2))
        A.e("s_lshl_b32 s%d, s%d, 7" % (sT0, sT0))
        A.e("v_add_u32 v%d, s%d, v14" % (T, sT0))
        for (dst, src) in ((sT2, sXB), (sT3, sWB)):
            A.e("s_mul_i32 s%d, s%d, 112" % (dst, src))
            A.e("s_add_u32 s%d, s%d, s%d" % (dst, dst, sT1))
            A.e("s_lshl_b32 s%d, s%d, 10" % (dst, dst))
            A.e("s_add_u32 s%d, s%d, %d" % (dst, dst, WS_HID))
        self.poll(T, 0xff, T + 2, FLAG_D)
        self.stamp()
        tk = {}
        def ld(n):
            ks, r = n // 2, n % 2
            so = (sT2, sT3)[r]
            if ks % 4 == 0 and ks:
                A.e("s_add_u32 s%d, s%d, 4096" % (so, so))
            d = GF + 4 * (n % NG)
            tk[n] = A.e("buffer_load_dwordx4 v[%d:%d], v%d, s[%d:%d], s%d offen offset:%d sc1" % (d, d + 3, vL16, SRD_WS, SRD_WS + 3, so, (ks % 4) * 1024))
        for n in range(NG): ld(n)
        for n in range(56):
            ks, r = n // 2, n % 2
            A.wait_vm(tk[n])
            for c in range(2):
                acc = ACC + 16 * (2 * r + c)
                A.e("%s %s, %s, %s, %s" % (MF, v(acc, 16), a(4 * (2 * ks + c), 4), v(GF + 4 * (n % NG), 4), "0" if ks == 0 else v(acc, 16)))
            if n + NG < 56: ld(n + NG)
        A.e("s_barrier")
        A.e("v_add_u32 v%d, s%d, v%d" % (T, sTRN, vL16))
        for i in range(1, 4):
            for g in range(4):
                A.e("ds_write_b128 v%d, v[%d:%d] offset:%d" % (T, ACC + 16 * i + 4 * g, ACC + 16 * i + 4 * g + 3, (i - 1) * 4096 + g * 1024))
        for j in range(8):
            A.e("v_lshlrev_b32 v%d, 16, v%d" % (T + 2, B2 + j))
            A.e("v_and_b32 v%d, 0xffff0000, v%d" % (T + 3, B2 + j))
            A.e("v_add_f32 v%d, v%d, v%d" % (ACC + 2 * j, ACC + 2 * j, T + 2))
            A.e("v_add_f32 v%d, v%d, v%d" % (ACC + 2 * j + 1, ACC + 2 * j + 1, T + 3))
            A.e("v_lshlrev_b32 v%d, 16, v%d" % (T + 2, XR + j))
            A.e("v_and_b32 v%d, 0xffff0000, v%d" % (T + 3, XR + j))
            A.e("v_add_f32 v%d, v%d, v%d" % (ACC + 2 * j, ACC + 2 * j, T + 2))
            A.e("v_add_f32 v%d, v%d, v%d" % (ACC + 2 * j + 1, ACC + 2 * j + 1, T + 3))
        A.e("v_and_b32 v%d, 31, v1" % (T + 4))
        A.e("v_mul_u32_u24 v%d, 896, v%d" % (T + 4, T + 4))
        A.e("v_lshrrev_b32 v%d, 5, v1" % (T + 5))
        A.e("v_lshl_add_u32 v%d, v%d, 4, v%d" % (T + 4, T + 5, T + 4))
        A.e("s_mul_i32 s%d, s%d, %d" % (sT0, sXB, 32 * 896))
        A.e("s_lshl_b32 s%d, s%d, 7" % (sT1, sCB))
        A.e("s_add_u32 s%d, s%d, s%d" % (sT0, sT0, sT1))
        A.e("s_and_b32 s%d, s%d, 1" % (sT1, sW))
        A.e("s_lshl_b32 s%d, s%d, 6" % (sT1, sT1))
        A.e("s_add_u32 s%d, s%d, s%d" % (sT0, sT0, sT1))
        A.wait_all(vm=False)
        A.e("s_barrier")
        tk = {}
        for i in range(1, 4):
            for g in range(4):
                tk[i] = A.e("ds_read_b128 v[%d:%d], v%d offset:%d" % (ACC + 16 * i + 4 * g, ACC + 16 * i + 4 * g + 3, 10 + i, g * 1024))
        for i in range(1, 4):
            A.wait_lg(tk[i])
            for r in range(0, 16, 2):
                A.e("v_pk_add_f32 v[%d:%d], v[%d:%d], v[%d:%d]" % (ACC + r, ACC + r + 1, ACC + r, ACC + r + 1, ACC + 16 * i + r, ACC + 16 * i + r + 1))
        for j in range(8):
            A.e("v_cvt_pk_bf16_f32 v%d, v%d, v%d" % (GF + j, ACC + 2 * j, ACC + 2 * j + 1))
        for p in range(2):
            b = GF + 4 * p
            A.e("v_permlane32_swap_b32 v%d, v%d" % (b, b + 2))
            A.e("v_permlane32_swap_b32 v%d, v%d" % (b + 1, b + 3))
            A.e("buffer_store_dwordx4 v[%d:%d], v%d, s[%d:%d], s%d offen offset:%d" % (b, b + 3, T + 4, SRD_OUT, SRD_OUT + 3, sT0, 32 * p))
        if self.stamps:
            A.branch("s_branch L_p5_done")
            A.label(Lskip)
            self.nst -= 1; self.stamp()
            A.label("L_p5_done")
        else:
            A.label(Lskip)

    def finish(self):
        A = self.A
        self.stamp()
        if self.stamps:
            A.e("s_lshl_b32 s%d, s2, 2" % sT0)
            A.e("s_add_u32 s%d, s%d, s%d" % (sT0, sT0, sW))
            A.e("s_lshl_b32 s%d, s%d, 6" % (sT0, sT0))
            A.e("s_add_u32 s%d, s%d, %d" % (sT0, sT0, WS_STAMP))
            A.e("v_mov_b32 v5, 0")
            A.e("s_mov_b64 exec, 1")
            for i in range(self.nst):
                A.e("s_sub_u32 s%d, s%d, s%d" % (sT1, sSTAMP + 2 * i, sSTAMP))
                A.e("v_mov_b32 v4, s%d" % sT1)
                A.e("buffer_store_dword v4, v5, s[%d:%d], s%d offen offset:%d" % (SRD_WS, SRD_WS + 3, sT0, 4 * i))
            A.e("s_mov_b64 exec, -1")
        A.e("s_waitcnt vmcnt(0)")
        A.label("L_end")
        A.e("s_endpgm")

    def build(self):
        A = self.A
        self.setup()
        self.p1()
        for n, f in ((2, "p2"), (3, "p3"), (4, "p4"), (5, "p5")):
            if self.stop >= n and hasattr(self, f):
                getattr(self, f)()
        self.finish()
        hdr = open("cdna_kernels/%s.s.ref" % NAME).read().split("; @launch")[0]
        out = hdr + "; @launch grid=(256,1,1) block=(256,1,1) lds=%d\n" % LDS_BYTES
        out += '.amdgcn_target "amdgcn-amd-amdhsa--gfx950"\n.text\n.globl %s_kernel\n.p2align 8\n.type %s_kernel,@function\n%s_kernel:\n' % (NAME, NAME, NAME)
        out += A.text()
        out += '.section .rodata,"a"\n.p2align 6\n.amdhsa_kernel %s_kernel\n' % NAME
        out += "  .amdhsa_next_free_vgpr 512\n  .amdhsa_next_free_sgpr 102\n  .amdhsa_accum_offset 256\n  .amdhsa_group_segment_fixed_size 0\n"
        out += "  .amdhsa_kernarg_size 88\n  .amdhsa_user_sgpr_count 2\n  .amdhsa_user_sgpr_kernarg_segment_ptr 1\n  .amdhsa_system_sgpr_workgroup_id_x 1\n.end_amdhsa_kernel\n"
        return out

if __name__ == "__main__":
    import argparse
    ap = argparse.ArgumentParser()
    ap.add_argument("--stop", type=int, default=99)
    ap.add_argument("--stamps", action="store_true")
    ap.add_argument("--la", type=int, default=3)
    ap.add_argument("--w1pre", type=int, default=12)
    ap.add_argument("--nostage", action="store_true")
    ap.add_argument("--force_fb", action="store_true")
    ap.add_argument("-o", default="k.s")
    args = ap.parse_args()
    g = Gen(stop=args.stop, stamps=args.stamps, la=args.la, w1pre=args.w1pre, stage=not args.nostage, force_fb=args.force_fb)
    open(args.o, "w").write(g.build())
    print("lines", len(g.A.lines), "nops", g.A.nops, "maxv", g.A.maxv, "maxa", g.A.maxa, "maxs", g.A.maxs)
```
